```python
import torch

def _softmax(x, axis=-1):
    return torch.softmax(x, dim=axis)
def _gelu(x):
    return torch.nn.functional.gelu(x, approximate="tanh")
def _silu(x):
    return torch.nn.functional.silu(x)
def _sigmoid(x):
    return torch.sigmoid(x)
def _layernorm(x, axis=-1, eps=1e-5):
    m = x.mean(dim=axis, keepdim=True)
    v = x.var(dim=axis, keepdim=True, unbiased=False)
    return (x - m) / torch.sqrt(v + eps)
def _scatter_add(tgt, idx, src, axis=0):
    return tgt.clone().index_add_(axis, idx, src)
def _segment_sum(src, seg, n):
    out = torch.zeros((n,) + src.shape[1:], dtype=src.dtype)
    return out.index_add_(0, seg, src)
def _pad(x, pw):
    flat = tuple(v for pair in reversed(pw) for v in pair)
    return torch.nn.functional.pad(x, flat)

kernel_name = 'parallel_sum__mha_block_cached__geglu_ffn__decode'

def setup_inputs():

    _w = (lambda a: (lambda t: t.to(torch.bfloat16) if t.is_floating_point() else t)(torch.as_tensor(a)))
    def _A_setup():
        B, Sq, D = 4, 1, 448
        H, Sk, Dh = 16, 4096, 256
        return {
            "x": _w((lambda *s: torch.randn(*s, dtype=torch.bfloat16) * 0.05)(B, Sq, D)),
            "k_cache": _w((lambda *s: torch.randn(*s, dtype=torch.bfloat16) * 3.2)(B, H, Sk, Dh)),
            "v_cache": _w((lambda *s: torch.randn(*s, dtype=torch.bfloat16) * 1.6)(B, H, Sk, Dh)),
            "wq": _w((lambda *s: torch.randn(*s, dtype=torch.bfloat16) * 3.2)(D, H * Dh) * (D ** -0.5)),
            "wo": _w((lambda *s: torch.randn(*s, dtype=torch.bfloat16) * 1.6)(H * Dh, D) * ((H * Dh) ** -0.5)),
        }
    _A_in = _A_setup()

    def _B_setup():
        B, S, D, F = 4, 1, 448, 1792
        return {
            "x": _w((lambda *s: torch.randn(*s, dtype=torch.bfloat16) * 0.05)(B, S, D)),
            "w_gate": _w((lambda *s: torch.randn(*s, dtype=torch.bfloat16) * 0.05)(D, F)),
            "w_up": _w((lambda *s: torch.randn(*s, dtype=torch.bfloat16) * 0.05)(D, F)),
            "w_down": _w((lambda *s: torch.randn(*s, dtype=torch.bfloat16) * 0.05)(F, D)),
        }
    _B_in = _B_setup()

    return {
        "A_x": _A_in["x"],
        "A_k_cache": _A_in["k_cache"],
        "A_v_cache": _A_in["v_cache"],
        "A_wq": _A_in["wq"],
        "A_wo": _A_in["wo"],
        "B_x": _B_in["x"],
        "B_w_gate": _B_in["w_gate"],
        "B_w_up": _B_in["w_up"],
        "B_w_down": _B_in["w_down"],
    }

def reference(A_x, A_k_cache, A_v_cache, A_wq, A_wo, B_x, B_w_gate, B_w_up, B_w_down):
    def _A_ref(x, k_cache, v_cache, wq, wo):
        B, Sq, D = x.shape
        H, Dh = 16, 256
        q = (lambda x, *d: x.permute(*d))((x @ wq).reshape(B, Sq, H, Dh), 0, 2, 1, 3)
        scores = torch.einsum("bhqd,bhkd->bhqk", q, k_cache) * (Dh ** -0.5)
        p = _softmax(scores, axis=-1)
        o = torch.einsum("bhqk,bhkd->bhqd", p, v_cache)
        return (lambda x, *d: x.permute(*d))(o, 0, 2, 1, 3).reshape(B, Sq, H * Dh) @ wo

    def _B_ref(x, w_gate, w_up, w_down):
        return (_gelu(x @ w_gate) * (x @ w_up)) @ w_down

    x = A_x
    xn = _layernorm(x, axis=-1)
    return x + _A_ref(xn, A_k_cache, A_v_cache, A_wq, A_wo) + _B_ref(xn, B_w_gate, B_w_up, B_w_down)
```

```python
import re

def _regs(op):
    op = op.strip()
    op = op.lstrip('-')
    m = re.fullmatch(r'abs\((.*)\)|\|(.*)\|', op)
    if m: op = m.group(1) or m.group(2)
    m = re.fullmatch(r'([vsa])(\d+)', op)
    if m: return m.group(1), {int(m.group(2))}
    m = re.fullmatch(r'([vsa])\[(\d+):(\d+)\]', op)
    if m: return m.group(1), set(range(int(m.group(2)), int(m.group(3))+1))
    if op == 'vcc': return 's', {106, 107}
    if op == 'vcc_lo': return 's', {106}
    if op == 'vcc_hi': return 's', {107}
    if op == 'exec': return 's', {126, 127}
    return None, set()

TRANS = ('v_exp_f32', 'v_log_f32', 'v_rcp_f32', 'v_rsq_f32', 'v_sqrt_f32', 'v_sin_f32', 'v_cos_f32')

class Ins:
    def __init__(self, text):
        self.text = text
        t = text.split(';')[0].strip()
        self.label = t.endswith(':')
        self.op = ''
        self.vw = set(); self.vr = set(); self.sw = set(); self.sr = set()
        self.valu = self.trans = self.dot = self.mfma = self.dpp = self.perml = self.rdl = self.vmem = self.ds = self.wstore = False
        self.srcC = set(); self.srcAB = set(); self.states = 1
        if self.label or not t or t.startswith('.'):
            self.states = 0
            return
        parts = t.split(None, 1)
        op = parts[0]; self.op = re.sub(r'_(e32|e64|dpp|sdwa)$', '', op)
        rest = parts[1] if len(parts) > 1 else ''
        ops = []; depth = 0; cur = ''
        for ch in rest:
            if ch == '[': depth += 1
            if ch == ']': depth -= 1
            if ch == ',' and depth == 0: ops.append(cur); cur = ''
            else: cur += ch
        if cur.strip(): ops.append(cur)
        if ops:
            last = ops[-1].strip().split()
            mods = last[1:]; ops[-1] = last[0]
        else: mods = []
        ops = [o.strip() for o in ops]
        self.mods = ' '.join(mods)
        def rd(o):
            k, s = _regs(o)
            if k == 'v': self.vr |= s
            elif k == 's': self.sr |= s
        def wr(o):
            k, s = _regs(o)
            if k == 'v': self.vw |= s
            elif k == 's': self.sw |= s
        o = self.op
        if o == 's_nop':
            self.states = int(ops[0], 0) + 1
        elif o.startswith('v_'):
            self.valu = True
            self.dpp = op.endswith('_dpp') or 'row_' in self.mods or 'quad_perm' in self.mods
            self.trans = o in TRANS
            self.dot = o.startswith('v_dot')
            self.mfma = o.startswith('v_mfma')
            self.perml = o.startswith('v_permlane')
            self.rdl = o in ('v_readlane_b32', 'v_readfirstlane_b32')
            wr(ops[0])
            srcs = ops[1:]
            if o.endswith('_co_u32'):
                wr(ops[1]); srcs = ops[2:]
            for s_ in srcs: rd(s_)
            if self.perml: rd(ops[0]); wr(ops[1])
            if o in ('v_fmac_f32', 'v_dot2c_f32_bf16') or self.dpp: rd(ops[0])
            if self.mfma:
                self.srcAB = _regs(ops[1])[1] | _regs(ops[2])[1]
                k, s = _regs(ops[3]); self.srcC = s if k == 'v' else set()
            if o == 'v_dot2_f32_bf16':
                self.srcAB = _regs(ops[1])[1] | _regs(ops[2])[1]
            if o == 'v_dot2c_f32_bf16':
                self.srcAB = _regs(ops[1])[1] | _regs(ops[2])[1]
        elif o.startswith('buffer_') or o.startswith('global_'):
            self.vmem = True
            if 'load' in o:
                if 'lds' in mods:
                    for s_ in ops: rd(s_)
                else:
                    wr(ops[0])
                    for s_ in ops[1:]: rd(s_)
                    self.sw = set()
            else:
                for s_ in ops: rd(s_)
                if 'x3' in o or 'x4' in o:
                    self.wstore = True; self.sdata = _regs(ops[0])[1]
        elif o.startswith('ds_'):
            self.ds = True
            if 'read' in o or 'rtn' in o or 'permute' in o or 'swizzle' in o:
                wr(ops[0])
                for s_ in ops[1:]: rd(s_)
            else:
                for s_ in ops: rd(s_)

def need(p, c):
    n = 0
    if p.valu and not p.mfma:
        ov = p.vw & c.vr
        if ov:
            if c.valu and c.dpp: n = max(n, 2)
            if c.perml: n = max(n, 2)
            if c.rdl: n = max(n, 1)
            if c.mfma: n = max(n, 2)
            if p.trans and c.valu and not c.trans: n = max(n, 1)
        if p.dot:
            if c.op == p.op:
                if p.vw & c.srcAB: n = max(n, 3)
            elif p.vw & (c.vr | c.vw): n = max(n, 3)
        if p.sw:
            if c.valu and (p.sw & c.sr): n = max(n, 4 if c.op in ('v_readlane_b32', 'v_writelane_b32') else 2)
            if c.vmem and (p.sw & c.sr): n = max(n, 5)
            if c.op.startswith('s_') and c.op != 's_nop' and c.op != 's_waitcnt': n = max(n, 1)
    if p.mfma:
        passes = 8 if '32x32' in p.op else 4
        full = 12 if passes == 8 else 8
        if c.mfma:
            if p.vw & c.srcAB: n = max(n, full)
            if p.vw & c.srcC and p.vw != c.srcC: n = max(n, 10 if passes == 8 else 6)
            if (p.vw & c.vw) and not (p.vw == c.srcC): n = max(n, full)
        elif p.vw & (c.vr | c.vw): n = max(n, full)
        if c.valu and not c.mfma and (p.srcC & c.vw): n = max(n, 7 if passes == 8 else 3)
    if p.wstore and (p.sdata & c.vw): n = max(n, 2)
    return n

def fix_hazards(lines):
    out = []; hist = []
    nins = 0
    for ln in lines:
        c = Ins(ln)
        if c.states == 0:
            out.append(ln); continue
        dist = 0; req = 0
        for p in reversed(hist):
            r = need(p, c) - dist
            req = max(req, r)
            dist += p.states
            if dist >= 14: break
        while req > 0:
            k = min(req, 16)
            nop = f"s_nop {k-1}"
            out.append(nop); hist.append(Ins(nop)); req -= k; nins += 1
        out.append(ln); hist.append(c)
        hist = hist[-20:]
    return out, nins
```

```python
import sys, struct
from asmlib import fix_hazards
KN = "parallel_sum__mha_block_cached__geglu_ffn__decode"

def f32(x): return "0x%08x" % struct.unpack("<I", struct.pack("<f", x))[0]

WS_E   = 0
WS_QP  = 0x10000
WS_SC  = 0x100000
WS_Y   = 0x200000
WS_YF  = 0x300000
WS_SZ  = 0x400000
STAMP  = 256 << 20
L_Q = 0; L_FL = 512; L_O = 1024; L_XN = 2048; L_SC = 8192; L_P = 12288; PSTR = 2304; PROW = 272; L_FF = 24576; LDS_SZ = 32768

HEADER = open("cdna_kernels/%s.s.ref" % KN).read().split("; Override launch")[0] if False else ""

def gen(D=5, R=40, stamps=0, FFN0=128, RED0=0, kvflag="nt", wflag="nt", woflag="nt", NPoff=5, B1off=2, prio=0, DV=None, DEND=None, TEND=0):
    DV = DV or D
    L = []
    def A(s): L.append(s)
    def srd(base, lo, nbytes):
        A(f"s_mov_b32 s{base}, s{lo}"); A(f"s_mov_b32 s{base+1}, s{lo+1}")
        A(f"s_mov_b32 s{base+2}, {nbytes}"); A(f"s_mov_b32 s{base+3}, 0x20000")
    def rowred(op, r):
        for n in (8, 4, 2, 1): A(f"{op}_dpp v{r}, v{r}, v{r} row_ror:{n} row_mask:0xf bank_mask:0xf")
    def wavered(op, r, t):
        rowred(op, r)
        A(f"v_mov_b32 v{t}, v{r}"); A(f"v_permlane16_swap_b32 v{t}, v{r}"); A(f"{op} v{r}, v{r}, v{t}")
        A(f"v_mov_b32 v{t}, v{r}"); A(f"v_permlane32_swap_b32 v{t}, v{r}"); A(f"{op} v{r}, v{r}, v{t}")
    def stamp(k):
        if stamps: A(f"s_memrealtime s[{80+2*k}:{81+2*k}]")
    def stamp_out(nst):
        if not stamps: return
        A("s_waitcnt lgkmcnt(0)")
        A("s_mov_b64 exec, 1")
        A(f"s_lshl_b32 s8, s2, 3"); A("s_add_u32 s8, s8, s3"); A("s_lshl_b32 s8, s8, 6"); A(f"s_add_u32 s8, s8, {STAMP}")
        A(f"s_mov_b32 s50, {512<<20}")
        for k in range(0, 8, 2):
            for j in range(4): A(f"v_mov_b32 v{4+j}, s{80+2*k+j}")
            A(f"buffer_store_dwordx4 v[4:7], off, s[48:51], s8 offset:{8*k}")
            A("s_nop 2")
    TMO = 400000
    lab = [0]
    def newlab(p):
        lab[0] += 1; return f"L_{p}{lab[0]}"

    A(f"{KN}_kernel:")
    if stamps:
        A("s_memrealtime s[80:81]")
    A("s_cmp_ge_u32 s2, 256"); A("s_cbranch_scc1 L_end")
    A("s_load_dwordx16 s[16:31], s[0:1], 0")
    A("s_load_dwordx8 s[32:39], s[0:1], 64")
    A("v_lshrrev_b32 v2, 6, v0"); A("v_and_b32 v1, 63, v0"); A("v_readfirstlane_b32 s3, v2")
    A("s_and_b32 s5, s2, 7"); A("s_lshl_b32 s5, s5, 1"); A("s_bfe_u32 s8, s2, 0x10003"); A("s_add_u32 s5, s5, s8")
    A("s_bfe_u32 s6, s2, 0x20004"); A("s_lshr_b32 s4, s2, 6")
    A("s_lshl_b32 s7, s4, 4"); A("s_add_u32 s7, s7, s5")
    A("s_mov_b32 s60, 0x05040100"); A("s_mov_b32 s61, 0x07060302")
    A(f"s_mov_b32 s62, {f32(1.4426950408889634/16.0)}")
    if stamps:
        for k in range(82, 96): A(f"s_mov_b32 s{k}, 0")
    A("s_cmp_ge_u32 s3, 4"); A("s_cbranch_scc1 L_helper")

    if prio: A(f"s_setprio {prio}")
    RING = 256 - 4*R
    assert RING >= 80
    A("v_lshlrev_b32 v2, 4, v1")
    A("v_lshrrev_b32 v6, 3, v1"); A("v_and_b32 v7, 7, v1")
    A("v_lshlrev_b32 v3, 9, v6"); A("v_lshl_add_u32 v3, v7, 4, v3")
    A("s_lshl_b32 s10, s7, 21")
    A("s_lshl_b32 s8, s3, 2"); A("s_add_u32 s8, s8, s6"); A("s_lshl_b32 s56, s8, 10"); A("s_add_u32 s56, s56, s10")
    A("s_lshl_b32 s57, s3, 12"); A("s_lshl_b32 s9, s6, 7"); A("s_add_u32 s57, s57, s9"); A("s_add_u32 s57, s57, s10")
    A("s_waitcnt lgkmcnt(0)")
    srd(40, 18, 128 << 20); srd(44, 20, 128 << 20)
    vm = []
    done = [0]
    def vm_issue(tag): vm.append(tag)
    def vm_wait(tag):
        i = vm.index(tag)
        if i < done[0]: return
        A(f"s_waitcnt vmcnt({len(vm)-1-i})"); done[0] = i+1
    def slot(n): return RING + 4*(n % R)
    def issue(n):
        r = slot(n)
        if n < 128:
            A(f"buffer_load_dwordx4 v[{r}:{r+3}], v2, s[40:43], s56 offen {kvflag}"); A("s_addk_i32 s56, 0x4000")
        else:
            A(f"buffer_load_dwordx4 v[{r}:{r+3}], v3, s[44:47], s57 offen {kvflag}"); A("s_addk_i32 s57, 0x4000")
        vm_issue(n)
    def depth(n):
        if DEND and n >= 256 - TEND: return DEND
        return D if n < 128 else DV
    st = dict(n=0, c=0)
    for n in range(D): issue(n)
    st['n'] = D
    srd(48, 38, WS_SZ); srd(52, 36, 256)
    A("v_bfe_u32 v4, v1, 4, 1"); A("v_bfe_u32 v8, v1, 3, 1"); A("v_lshl_add_u32 v4, v8, 1, v4"); A("v_bfe_u32 v8, v1, 2, 1"); A("v_lshl_add_u32 v4, v8, 2, v4")
    A("v_lshrrev_b32 v8, 5, v1"); A("v_lshl_add_u32 v4, v8, 7, v4"); A("v_lshlrev_b32 v4, 2, v4")
    A("s_lshl_b32 s9, s3, 10"); A(f"s_add_u32 s9, s9, {L_SC}"); A("v_add_u32 v4, s9, v4")
    A("v_add_u32 v76, s9, v2")
    A(f"s_mul_i32 s9, s3, {PSTR}"); A(f"s_add_u32 s9, s9, {L_P}")
    A(f"v_mul_u32_u24 v5, {PROW}, v6"); A("v_add_u32 v5, s9, v5"); A("v_lshl_add_u32 v77, v7, 5, v5")
    A("v_lshrrev_b32 v8, 5, v1"); A("v_bfe_u32 v9, v1, 4, 1"); A("v_lshl_add_u32 v8, v9, 1, v8"); A("v_bfe_u32 v9, v1, 3, 1"); A("v_lshl_add_u32 v8, v9, 2, v8")
    A("v_lshl_add_u32 v8, v7, 3, v8"); A("v_lshlrev_b32 v78, 4, v8"); A("s_lshl_b32 s9, s3, 2"); A(f"s_add_u32 s9, s9, {L_O}"); A("v_add_u32 v78, s9, v78")
    A("v_and_b32 v79, 31, v1"); A("v_lshlrev_b32 v79, 4, v79")
    A("v_lshlrev_b32 v72, 3, v1")
    A("v_lshrrev_b32 v8, 4, v1"); A("v_and_b32 v9, 15, v1"); A("v_lshlrev_b32 v73, 10, v8"); A("v_lshl_add_u32 v73, v9, 5, v73")
    A("v_lshlrev_b32 v74, 10, v9")
    A(f"s_lshl_b32 s58, s7, 14"); A(f"s_add_u32 s58, s58, {WS_SC}")
    A("s_lshl_b32 s9, s3, 12"); A("s_add_u32 s59, s58, s9")
    A("s_lshl_b32 s9, s6, 10"); A("s_add_u32 s63, s59, s9")
    for e in range(8): A(f"v_mov_b32 v{24+e}, 0")
    A("s_barrier")
    def paced_issue():
        n = st['n']
        if n >= 256 or n - st['c'] >= R: return False
        k = n - depth(n)
        if k >= 0: vm_wait(k)
        issue(n); st['n'] += 1
        return True
    def consumeK(j):
        vm_wait(j)
        r = slot(j); a = 12 + (j % 8)
        A(f"v_dot2_f32_bf16 v{a}, v{r}, v8, 0")
        for m in range(1, 4): A(f"v_dot2_f32_bf16 v{a}, v{r+m}, v{8+m}, v{a}")
        jj = j % 8
        if jj % 2 == 1:
            A(f"v_permlane16_swap_b32 v{a-1}, v{a}"); A(f"v_add_f32 v{a-1}, v{a-1}, v{a}")
        if jj % 4 == 3:
            b = a - 3
            A(f"v_add_f32_dpp v{b+1}, v{b}, v{b} row_ror:8 row_mask:0xf bank_mask:0x3")
            A(f"v_add_f32_dpp v{b+1}, v{b+2}, v{b+2} row_ror:8 row_mask:0xf bank_mask:0xc")
        if jj == 7:
            A("v_add_f32_dpp v15, v13, v13 row_half_mirror row_mask:0xf bank_mask:0x5")
            A("v_add_f32_dpp v15, v17, v17 row_half_mirror row_mask:0xf bank_mask:0xa")
            A("v_add_f32_dpp v15, v15, v15 quad_perm:[1,0,3,2] row_mask:0xf bank_mask:0xf")
            A("v_add_f32_dpp v15, v15, v15 quad_perm:[2,3,0,1] row_mask:0xf bank_mask:0xf")
            A(f"ds_write_b32 v4, v15 offset:{(j//8)*32}")
        st['c'] = j + 1
    def consumeV2(n):
        j = n - 128
        g = j // 8
        pb = 32 + 4*(g % 2)
        if j % 8 == 0:
            A("s_waitcnt lgkmcnt(0)")
            if g + 1 < 16:
                nb = 32 + 4*((g+1) % 2)
                A(f"ds_read_b128 v[{nb}:{nb+3}], v5 offset:{(g+1)*16}")
        vm_wait(n+1)
        ra, rb = slot(n), slot(n+1); pp = pb + (j % 8)//2
        for m in range(4):
            t = 40 + 2*(m % 2)
            A(f"v_perm_b32 v{t}, v{rb+m}, v{ra+m}, s60"); A(f"v_perm_b32 v{t+1}, v{rb+m}, v{ra+m}, s61")
            A(f"v_dot2c_f32_bf16 v{24+2*m}, v{t}, v{pp}"); A(f"v_dot2c_f32_bf16 v{25+2*m}, v{t+1}, v{pp}")
        st['c'] = n + 2
    def landed(k):
        return k in vm and vm.index(k) < done[0]
    rare = []
    while st['n'] < R - B1off: paced_issue()
    stamp(1)
    A("s_barrier")
    stamp(2)
    A(f"ds_read_b128 v[8:11], v79 offset:{L_Q}")
    paced_issue()
    A("s_waitcnt lgkmcnt(0)")
    ackstate = 0
    while st['c'] < 128:
        ok = paced_issue()
        k = 0
        while st['c'] < 128 and k < 3 and (landed(st['c']) or (not ok and k == 0)):
            consumeK(st['c']); k += 1
        if ackstate == 0 and st['n'] >= 104:
            A("buffer_load_dword v75, off, s[52:55], 0 sc1"); vm_issue("ack"); ackstate = 1
        elif ackstate == 1 and landed("ack"):
            A("v_readfirstlane_b32 s8, v75"); A("s_cmp_lt_u32 s8, 256"); A("s_cbranch_scc1 L_ackslow"); A("L_ackback:")
            ackstate = 2
    assert ackstate == 2
    rare += ["L_ackslow:", "s_mov_b32 s9, 0", "L_ackslow1:", "s_sleep 2", "buffer_load_dword v75, off, s[52:55], 0 sc1", "s_waitcnt vmcnt(0)",
             "v_readfirstlane_b32 s8, v75", "s_cmp_ge_u32 s8, 256", "s_cbranch_scc1 L_ackback",
             "s_add_u32 s9, s9, 1", f"s_cmp_lt_u32 s9, {TMO}", "s_cbranch_scc1 L_ackslow1", "s_branch L_ackback"]
    stamp(3)
    A("s_waitcnt lgkmcnt(0)")
    A("ds_read_b128 v[44:47], v76")
    A("s_waitcnt lgkmcnt(0)")
    A("v_cvt_pk_bf16_f32 v48, v44, v45"); A("v_cvt_pk_bf16_f32 v49, v46, v47")
    A("v_min_u32 v48, -2, v48"); A("v_min_u32 v49, -2, v49")
    A("buffer_store_dwordx2 v[48:49], v72, s[48:51], s63 offen sc1"); vm_issue("st_sc")
    paced_issue()
    A("v_lshlrev_b32 v44, 16, v48"); A("v_and_b32 v45, 0xffff0000, v48"); A("v_lshlrev_b32 v46, 16, v49"); A("v_and_b32 v47, 0xffff0000, v49")
    A("v_max3_f32 v52, v44, v45, v46"); A("v_max_f32 v52, v52, v47"); A("v_max_f32 v52, 0xff7fffff, v52")
    wavered("v_max_f32", 52, 54)
    for i in range(4): A(f"v_sub_f32 v{44+i}, v{44+i}, v52")
    for i in range(4): A(f"v_mul_f32 v{44+i}, s62, v{44+i}")
    for i in range(4): A(f"v_exp_f32 v{44+i}, v{44+i}")
    A("v_add_f32 v53, v44, v45"); A("v_add_f32 v46, v46, v47"); A("v_add_f32 v53, v53, v46")
    paced_issue()
    wavered("v_add_f32", 53, 54)
    A("v_min_u32 v52, -2, v52"); A("v_min_u32 v53, -2, v53")
    A("s_mov_b64 exec, 1")
    A("buffer_store_dwordx2 v[52:53], off, s[48:51], s63 offset:512 sc1"); vm_issue("st_stat")
    A("s_mov_b64 exec, -1")
    NP = 128 + R - DV - NPoff
    while st['n'] < NP: paced_issue()
    def gather():
        return ["buffer_load_dwordx4 v[44:47], v73, s[48:51], s59 offen sc1", "buffer_load_dwordx4 v[48:51], v73, s[48:51], s59 offen offset:16 sc1",
                "buffer_load_dwordx2 v[52:53], v74, s[48:51], s58 offen offset:512 sc1"]
    chk = ["v_max3_u32 v54, v44, v45, v46", "v_max3_u32 v55, v47, v48, v49", "v_max3_u32 v54, v54, v50, v51", "v_max3_u32 v55, v55, v52, v53",
           "v_max_u32 v54, v54, v55", "v_cmp_eq_u32 vcc, -1, v54"]
    vm_wait("st_stat")
    for i, g_ in enumerate(gather()): A(g_); vm_issue(f"g{i}")
    while not landed("g2"):
        if not paced_issue(): vm_wait("g2")
    stamp(4)
    for c_ in chk: A(c_)
    A("s_cbranch_vccnz L_gslow"); A("L_gback:")
    rare += ["L_gslow:", "s_mov_b32 s9, 0", "L_gslow1:"] + gather() + ["s_waitcnt vmcnt(0)"] + chk + ["s_cbranch_vccz L_gback",
             "s_add_u32 s9, s9, 1", f"s_cmp_lt_u32 s9, {TMO}", "s_cbranch_scc1 L_gslow1", "s_branch L_gback"]
    stamp(5)
    A("v_mov_b32 v54, v52"); rowred("v_max_f32", 54)
    A("v_sub_f32 v52, v52, v54"); A("v_mul_f32 v52, s62, v52"); A("v_exp_f32 v52, v52"); A("v_mul_f32 v53, v53, v52")
    rowred("v_add_f32", 53); A("v_rcp_f32 v53, v53")
    paced_issue()
    for half in range(2):
        for i in range(4):
            A(f"v_lshlrev_b32 v{56+2*i}, 16, v{44+4*half+i}"); A(f"v_and_b32 v{57+2*i}, 0xffff0000, v{44+4*half+i}")
        for i in range(8): A(f"v_sub_f32 v{56+i}, v{56+i}, v54")
        for i in range(8): A(f"v_mul_f32 v{56+i}, s62, v{56+i}")
        for i in range(8): A(f"v_exp_f32 v{56+i}, v{56+i}")
        for i in range(8): A(f"v_mul_f32 v{56+i}, v{56+i}, v53")
        for i in range(4): A(f"v_cvt_pk_bf16_f32 v{44+4*half+i}, v{56+2*i}, v{57+2*i}")
        A(f"ds_write_b128 v77, v[{44+4*half}:{47+4*half}] offset:{16*half}")
        paced_issue()
    A("s_waitcnt lgkmcnt(0)")
    A("ds_read_b128 v[32:35], v5")
    while st['c'] < 256:
        ok = paced_issue()
        k = 0
        lag = st['n'] - st['c']
        while st['c'] < 256 and k < 2 and (landed(st['c']+1) or (not ok and k == 0)):
            consumeV2(st['c']); k += 1
    stamp(6)
    for e in (24, 26, 28, 30):
        A(f"v_permlane32_swap_b32 v{e}, v{e+1}")
    for e in (24, 26, 28, 30):
        A(f"v_add_f32 v{e}, v{e}, v{e+1}")
    for e in (24, 28): A(f"v_permlane16_swap_b32 v{e}, v{e+2}")
    for e in (24, 28): A(f"v_add_f32 v{e}, v{e}, v{e+2}")
    A("v_add_f32_dpp v25, v24, v24 row_ror:8 row_mask:0xf bank_mask:0x3")
    A("v_add_f32_dpp v25, v28, v28 row_ror:8 row_mask:0xf bank_mask:0xc")
    A("ds_write_b32 v78, v25")
    A("s_waitcnt lgkmcnt(0)")
    A("s_barrier")
    stamp(7)
    stamp_out(8)
    A("s_endpgm")
    for r_ in rare: A(r_)

    RAW, WB, RAW2, DD, AA = 64, 128, 192, 32, 24
    A("L_helper:")
    A("s_sub_u32 s11, s3, 4")
    A(f"v_mov_b32 v2, {L_FL}"); A("v_mov_b32 v3, 0")
    A("ds_write_b32 v2, v3"); A("ds_write_b32 v2, v3 offset:4")
    A("v_lshlrev_b32 v4, 4, v1")
    A("v_lshrrev_b32 v5, 4, v1"); A("v_and_b32 v6, 15, v1")
    A("v_lshrrev_b32 v7, 3, v1"); A("v_and_b32 v22, 7, v1")
    A("s_mul_i32 s8, s11, 896")
    A("s_waitcnt lgkmcnt(0)")
    A("s_add_u32 s40, s16, s8"); A("s_addc_u32 s41, s17, 0"); A("s_mov_b32 s42, 896"); A("s_mov_b32 s43, 0x20000")
    srd(48, 38, WS_SZ); srd(52, 36, 256)
    A("buffer_load_dwordx4 v[8:11], v4, s[40:43], 0 offen")
    A(f"buffer_load_dwordx2 v[20:21], off, s[48:51], 0 offset:{WS_E} sc1")
    srd(44, 22, 448*4096*2)
    A("s_cmp_lg_u32 s11, 0"); A("s_cbranch_scc1 L_nowq")
    A("v_lshlrev_b32 v23, 13, v7"); A("v_lshl_add_u32 v23, v22, 4, v23")
    A(f"s_mul_i32 s8, s4, {112*8192}"); A("s_lshl_b32 s9, s5, 9"); A("s_add_u32 s8, s8, s9"); A("s_lshl_b32 s9, s6, 7"); A("s_add_u32 s8, s8, s9")
    for i in range(14):
        A(f"buffer_load_dwordx4 v[{RAW+4*i}:{RAW+4*i+3}], v23, s[44:47], s8 offen {wflag}")
        if i < 13: A("s_add_u32 s8, s8, 0x10000")
    A("s_barrier")
    A("s_waitcnt vmcnt(15)")
    A("s_branch L_ln")
    A("L_nowq:")
    A("s_barrier")
    A("s_waitcnt vmcnt(1)")
    A("L_ln:")
    for i in range(4):
        A(f"v_lshlrev_b32 v{12+2*i}, 16, v{8+i}"); A(f"v_and_b32 v{13+2*i}, 0xffff0000, v{8+i}")
    A("v_add_f32 v8, v12, v13"); A("v_add_f32 v9, v14, v15"); A("v_add_f32 v10, v16, v17"); A("v_add_f32 v11, v18, v19")
    A("v_add_f32 v8, v8, v9"); A("v_add_f32 v10, v10, v11"); A("v_add_f32 v8, v8, v10")
    wavered("v_add_f32", 8, 9)
    A(f"v_mul_f32 v8, {f32(1.0/448)}, v8")
    A("v_sub_f32 v9, v12, v8"); A("v_mul_f32 v10, v9, v9")
    for i in range(1, 8):
        A(f"v_sub_f32 v9, v{12+i}, v8"); A("v_fmac_f32 v10, v9, v9")
    A("v_cmp_gt_u32 vcc, 56, v1"); A("v_cndmask_b32 v10, 0, v10, vcc")
    wavered("v_add_f32", 10, 9)
    A(f"v_mul_f32 v10, {f32(1.0/448)}, v10")
    A("v_cvt_pk_bf16_f32 v9, v8, v10")
    A("v_lshlrev_b32 v8, 16, v9"); A("v_and_b32 v10, 0xffff0000, v9")
    A(f"v_add_f32 v10, {f32(1e-5)}, v10"); A("v_cvt_pk_bf16_f32 v10, v10, v10"); A("v_lshlrev_b32 v10, 16, v10")
    A("v_sqrt_f32 v10, v10"); A("v_cvt_pk_bf16_f32 v10, v10, v10"); A("v_lshlrev_b32 v10, 16, v10")
    A("v_rcp_f32 v10, v10")
    for i in range(8): A(f"v_sub_f32 v{12+i}, v{12+i}, v8")
    for i in range(4): A(f"v_cvt_pk_bf16_f32 v{24+i}, v{12+2*i}, v{13+2*i}")
    for i in range(4):
        A(f"v_lshlrev_b32 v{12+2*i}, 16, v{24+i}"); A(f"v_and_b32 v{13+2*i}, 0xffff0000, v{24+i}")
    for i in range(8): A(f"v_mul_f32 v{12+i}, v{12+i}, v10")
    for i in range(4): A(f"v_cvt_pk_bf16_f32 v{24+i}, v{12+2*i}, v{13+2*i}")
    A("s_lshl_b32 s8, s11, 10"); A("v_add_u32 v9, s8, v4")
    A(f"ds_write_b128 v9, v[24:27] offset:{L_XN}")
    A("v_mov_b32 v3, 1")
    def flag_inc(off):
        A("s_waitcnt lgkmcnt(0)"); A("s_mov_b64 exec, 1"); A(f"ds_add_u32 v2, v3 offset:{off}"); A("s_mov_b64 exec, -1")
    def flag_spin(off, val):
        l = newlab("sp");
        A("s_mov_b32 s9, 0"); A(f"{l}:"); A(f"ds_read_b32 v9, v2 offset:{off}"); A("s_waitcnt lgkmcnt(0)"); A("v_readfirstlane_b32 s8, v9")
        A(f"s_cmp_ge_u32 s8, {val}"); A(f"s_cbranch_scc1 {l}d"); A("s_add_u32 s9, s9, 1"); A(f"s_cmp_lt_u32 s9, {TMO*8}"); A(f"s_cbranch_scc1 {l}"); A(f"{l}d:")
    flag_inc(0)
    def perms(raw, nld):
        for e in range(8):
            sel = "s60" if e % 2 == 0 else "s61"
            for t in range(nld//2):
                A(f"v_perm_b32 v{WB+8*e+t}, v{raw+8*t+4+e//2}, v{raw+8*t+e//2}, {sel}")
            if nld == 14: A(f"v_mov_b32 v{WB+8*e+7}, 0")
    def mfmas():
        for e in range(8): A(f"v_mfma_f32_16x16x32_bf16 v[{DD+4*e}:{DD+4*e+3}], v[{AA}:{AA+3}], v[{WB+8*e}:{WB+8*e+3}], 0")
        for e in range(8): A(f"v_mfma_f32_16x16x32_bf16 v[{DD+4*e}:{DD+4*e+3}], v[{AA+4}:{AA+7}], v[{WB+8*e+4}:{WB+8*e+7}], v[{DD+4*e}:{DD+4*e+3}]")
    def readA14(srow):
        A("v_lshrrev_b32 v9, 2, v6"); A("v_lshlrev_b32 v9, 10, v9"); A("v_and_b32 v10, 1, v6"); A("v_lshl_add_u32 v10, v5, 1, v10"); A("v_lshl_add_u32 v9, v10, 1, v9")
        A(f"s_mul_i32 s8, s{srow}, 224"); A("v_add_u32 v9, s8, v9")
        for i in range(14): A(f"ds_read_u16 v{DD+i}, v9 offset:{L_XN+16*i}")
        A(f"v_mov_b32 v{AA+7}, 0")
        A("s_waitcnt lgkmcnt(0)")
        for t in range(7): A(f"v_lshl_or_b32 v{AA+t}, v{DD+2*t+1}, 16, v{DD+2*t}")
    def fold14(dst):
        for m in range(4):
            A(f"v_add_f32_dpp v{dst[m]}, v{DD+4*m+1}, v{DD+4*m} row_ror:8 row_mask:0xf bank_mask:0x3")
            A(f"v_add_f32_dpp v{dst[m]}, v{DD+4*(m+4)}, v{DD+4*(m+4)+1} row_ror:8 row_mask:0xf bank_mask:0xc")
    A("s_cmp_lg_u32 s11, 0"); A("s_cbranch_scc1 L_notile")
    A("s_waitcnt vmcnt(0)")
    perms(RAW, 14)
    A("s_mov_b32 s8, 1664525"); A("s_mov_b32 s9, 22695477")
    A("v_mul_lo_u32 v20, v20, s8"); A("v_mul_lo_u32 v21, v21, s9"); A("v_add_u32 v20, 1013904223, v20"); A("v_add_u32 v21, 1, v21")
    A("v_mov_b32 v14, v20"); A("v_mov_b32 v15, v21"); A("v_mov_b32 v18, v20"); A("v_mov_b32 v19, v21")
    A("v_lshlrev_b32 v23, 13, v5"); A("v_lshl_add_u32 v23, v22, 6, v23"); A("v_bfe_u32 v10, v1, 3, 1"); A("v_lshl_add_u32 v23, v10, 5, v23")
    A("s_lshl_b32 s12, s5, 15"); A("s_lshl_b32 s13, s4, 11"); A("s_add_u32 s12, s12, s13"); A("s_lshl_b32 s13, s6, 9"); A("s_add_u32 s12, s12, s13"); A(f"s_add_u32 s12, s12, {WS_QP}")
    flag_spin(0, 4)
    readA14(4)
    mfmas()
    fold14([12, 13, 16, 17])
    A("buffer_store_dwordx4 v[12:15], v23, s[48:51], s12 offen sc1")
    A("buffer_store_dwordx4 v[16:19], v23, s[48:51], s12 offen offset:16 sc1")
    stamp(1)
    flag_inc(0)
    A("s_branch L_qpoll")
    A("L_notile:")
    A("s_waitcnt vmcnt(0)")
    A("s_mov_b32 s8, 1664525"); A("s_mov_b32 s9, 22695477")
    A("v_mul_lo_u32 v20, v20, s8"); A("v_mul_lo_u32 v21, v21, s9"); A("v_add_u32 v20, 1013904223, v20"); A("v_add_u32 v21, 1, v21")
    A("s_cmp_lg_u32 s11, 1"); A("s_cbranch_scc1 L_noclear")
    for i in range(4): A(f"v_mov_b32 v{12+i}, -1")
    A("s_lshl_b32 s8, s7, 14"); A("s_lshl_b32 s9, s6, 10"); A("s_add_u32 s8, s8, s9"); A(f"s_add_u32 s8, s8, {WS_SC}")
    for w in range(4):
        A("buffer_store_dwordx4 v[12:15], v4, s[48:51], s8 offen sc1")
        if w < 3: A("s_addk_i32 s8, 0x1000")
    A("s_lshl_b32 s8, s7, 2"); A("s_add_u32 s8, s8, s6"); A("s_lshl_b32 s8, s8, 11"); A(f"s_add_u32 s8, s8, {WS_Y}")
    A("buffer_store_dwordx4 v[12:15], v4, s[48:51], s8 offen sc1"); A("buffer_store_dwordx4 v[12:15], v4, s[48:51], s8 offen offset:1024 sc1")
    A(f"s_sub_u32 s9, s2, {FFN0}"); A("s_cmp_ge_u32 s9, 28"); A("s_cbranch_scc1 L_noclear")
    A("s_lshl_b32 s8, s9, 13"); A(f"s_add_u32 s8, s8, {WS_YF}")
    for k in range(2):
        for o in range(4): A(f"buffer_store_dwordx4 v[12:15], v4, s[48:51], s8 offen offset:{1024*o} sc1")
        if k == 0: A("s_addk_i32 s8, 0x1000")
    A("L_noclear:")
    flag_spin(0, 5)
    A("L_qpoll:")
    A("v_lshrrev_b32 v9, 5, v1"); A("v_and_b32 v10, 31, v1"); A("v_lshlrev_b32 v23, 11, v9"); A("v_lshl_add_u32 v23, v10, 4, v23")
    A("v_lshl_add_u32 v10, v10, 1, v9"); A("v_lshlrev_b32 v10, 1, v10"); A("s_lshl_b32 s8, s11, 7"); A("v_add_u32 v10, s8, v10")
    A("s_lshl_b32 s12, s5, 15"); A("s_lshl_b32 s13, s4, 13"); A("s_add_u32 s12, s12, s13"); A("s_lshl_b32 s13, s11, 9"); A("s_add_u32 s12, s12, s13"); A(f"s_add_u32 s12, s12, {WS_QP}")
    A("s_add_u32 s13, s12, 0x1000")
    A("s_mov_b32 s9, 0")
    A("L_qp1:")
    A("buffer_load_dwordx4 v[12:15], v23, s[48:51], s12 offen sc1")
    A("buffer_load_dwordx4 v[16:19], v23, s[48:51], s13 offen sc1")
    A("s_waitcnt vmcnt(0)")
    A("v_cmp_ne_u64 vcc, v[14:15], v[20:21]"); A("v_cmp_ne_u64 s[14:15], v[18:19], v[20:21]")
    A("s_or_b64 vcc, vcc, s[14:15]"); A("s_cbranch_scc0 L_qp2")
    A("s_add_u32 s9, s9, 1"); A(f"s_cmp_lt_u32 s9, {TMO}"); A("s_cbranch_scc1 L_qp1")
    A("L_qp2:")
    A("v_add_f32 v12, v12, v16"); A("v_add_f32 v13, v13, v17")
    A("v_permlane32_swap_b32 v12, v13"); A("v_add_f32 v12, v12, v13"); A("v_cvt_pk_bf16_f32 v12, v12, v12")
    A(f"ds_write_b16 v10, v12 offset:{L_Q}")
    A("s_waitcnt lgkmcnt(0)")
    stamp(2)
    A("s_barrier")
    A("s_cmp_lg_u32 s11, 1"); A("s_cbranch_scc1 L_noack")
    A("s_mov_b64 exec, 1"); A("buffer_atomic_add v3, off, s[52:55], 0 sc1"); A("s_mov_b64 exec, -1")
    A("L_noack:")
    A(f"v_mul_u32_u24 v23, {16*896}, v5"); A("v_lshl_add_u32 v23, v6, 4, v23")
    def load16(raw, flag):
        for i in range(16):
            A(f"buffer_load_dwordx4 v[{raw+4*i}:{raw+4*i+3}], v23, s[44:47], s8 offen offset:{896*(i%4)} {flag}")
            if i % 4 == 3 and i < 15: A(f"s_addk_i32 s8, {896*4}")
    A(f"s_sub_u32 s64, s2, {FFN0}"); A("s_cmp_ge_u32 s64, 28"); A("s_cbranch_scc1 L_noffn")
    A(f"v_mul_u32_u24 v11, 3584, v7"); A("v_lshl_add_u32 v11, v22, 4, v11")
    A(f"s_mul_i32 s12, s11, {112*3584}"); A("s_lshl_b32 s9, s64, 7"); A("s_add_u32 s12, s12, s9")
    for (raw, ptr) in ((RAW, 28), (RAW2, 30)):
        srd(44, ptr, 448*1792*2)
        A("s_mov_b32 s8, s12")
        for i in range(14):
            A(f"buffer_load_dwordx4 v[{raw+4*i}:{raw+4*i+3}], v11, s[44:47], s8 offen {wflag}")
            if i < 13: A(f"s_addk_i32 s8, {8*3584}")
    readA14(11)
    A("v_lshlrev_b32 v11, 8, v5"); A("v_lshl_add_u32 v11, v22, 5, v11"); A("v_bfe_u32 v10, v1, 3, 1"); A("v_lshl_add_u32 v11, v10, 4, v11")
    A("s_lshl_b32 s8, s11, 10"); A("v_add_u32 v11, s8, v11")
    A("s_waitcnt vmcnt(14)")
    perms(RAW, 14)
    srd(44, 32, 1792*448*2)
    A(f"s_mul_i32 s8, s64, {64*896}"); A("s_mul_i32 s9, s11, 224"); A("s_add_u32 s8, s8, s9")
    load16(RAW, wflag)
    mfmas(); fold14([12, 13, 14, 15])
    A(f"ds_write_b128 v11, v[12:15] offset:{L_FF}")
    A("s_waitcnt vmcnt(16)")
    perms(RAW2, 14)
    mfmas(); fold14([16, 17, 18, 19])
    A(f"ds_write_b128 v11, v[16:19] offset:{L_FF+4096}")
    flag_inc(4)
    A("s_waitcnt vmcnt(0)")
    perms(RAW, 16)
    A("v_lshrrev_b32 v10, 2, v6"); A("v_lshlrev_b32 v11, 8, v10"); A("v_lshl_add_u32 v11, v5, 6, v11"); A("v_and_b32 v10, 3, v6"); A("v_lshl_add_u32 v11, v10, 4, v11")
    flag_spin(4, 4)
    for m in range(2):
        for k in range(4): A(f"ds_read_b128 v[{DD+16*m+4*k}:{DD+16*m+4*k+3}], v11 offset:{L_FF+4096*m+1024*k}")
    A("s_waitcnt lgkmcnt(0)")
    for m in range(2):
        b = DD + 16*m
        for i in range(4):
            A(f"v_add_f32 v{b+i}, v{b+i}, v{b+4+i}"); A(f"v_add_f32 v{b+8+i}, v{b+8+i}, v{b+12+i}")
        for i in range(4): A(f"v_add_f32 v{b+i}, v{b+i}, v{b+8+i}")
        A(f"v_cvt_pk_bf16_f32 v{b+4}, v{b}, v{b+1}"); A(f"v_cvt_pk_bf16_f32 v{b+5}, v{b+2}, v{b+3}")
        A(f"v_lshlrev_b32 v{b}, 16, v{b+4}"); A(f"v_and_b32 v{b+1}, 0xffff0000, v{b+4}"); A(f"v_lshlrev_b32 v{b+2}, 16, v{b+5}"); A(f"v_and_b32 v{b+3}, 0xffff0000, v{b+5}")
    G, U, T = DD, DD+16, DD+4
    kk = -2.0 * 0.7978845608028654 * 1.4426950408889634
    A(f"s_mov_b32 s8, {f32(0.044715)}"); A(f"s_mov_b32 s9, {f32(kk)}")
    for i in range(4): A(f"v_mul_f32 v{T+i}, v{G+i}, v{G+i}")
    for i in range(4): A(f"v_mul_f32 v{T+i}, v{T+i}, v{G+i}")
    for i in range(4): A(f"v_fma_f32 v{T+i}, v{T+i}, s8, v{G+i}")
    for i in range(4): A(f"v_mul_f32 v{T+i}, s9, v{T+i}")
    for i in range(4): A(f"v_exp_f32 v{T+i}, v{T+i}")
    for i in range(4): A(f"v_add_f32 v{T+i}, 1.0, v{T+i}")
    for i in range(4): A(f"v_rcp_f32 v{T+i}, v{T+i}")
    for i in range(4): A(f"v_mul_f32 v{G+i}, v{G+i}, v{T+i}")
    A(f"v_cvt_pk_bf16_f32 v{T}, v{G}, v{G+1}"); A(f"v_cvt_pk_bf16_f32 v{T+1}, v{G+2}, v{G+3}")
    A(f"v_lshlrev_b32 v{G}, 16, v{T}"); A(f"v_and_b32 v{G+1}, 0xffff0000, v{T}"); A(f"v_lshlrev_b32 v{G+2}, 16, v{T+1}"); A(f"v_and_b32 v{G+3}, 0xffff0000, v{T+1}")
    for i in range(4): A(f"v_mul_f32 v{G+i}, v{G+i}, v{U+i}")
    A(f"v_cvt_pk_bf16_f32 v12, v{G}, v{G+1}"); A(f"v_cvt_pk_bf16_f32 v13, v{G+2}, v{G+3}")
    for qd in range(4):
        for t in range(2): A(f"v_mov_b32_dpp v{AA+2*qd+t}, v{12+t} quad_perm:[{qd},{qd},{qd},{qd}] row_mask:0xf bank_mask:0xf")
    mfmas()
    A("v_lshlrev_b32 v11, 11, v5"); A("v_lshl_add_u32 v11, v6, 5, v11")
    A("s_lshl_b32 s8, s64, 13"); A("s_mul_i32 s9, s11, 448"); A("s_add_u32 s8, s8, s9"); A(f"s_add_u32 s8, s8, {WS_YF}")
    for e in range(8): A(f"v_min_u32 v{12+e}, -2, v{DD+4*e}")
    A("s_mov_b32 exec_lo, 0x3fff3fff"); A("s_mov_b32 exec_hi, 0x3fff3fff")
    A("buffer_store_dwordx4 v[12:15], v11, s[48:51], s8 offen sc1"); A("buffer_store_dwordx4 v[16:19], v11, s[48:51], s8 offen offset:16 sc1")
    A("s_mov_b64 exec, -1")
    A("L_noffn:")
    stamp(3)
    srd(44, 24, 4096*448*2)
    A("s_lshl_b32 s8, s5, 2"); A("s_add_u32 s8, s8, s6"); A(f"s_mul_i32 s8, s8, {64*896}"); A("s_mul_i32 s9, s11, 224"); A("s_add_u32 s8, s8, s9")
    load16(RAW, woflag)
    A("s_waitcnt vmcnt(0)")
    perms(RAW, 16)
    A("v_lshlrev_b32 v2, 5, v6"); A("v_lshl_add_u32 v2, v5, 4, v2")
    A("s_lshl_b32 s65, s7, 2"); A("s_add_u32 s65, s65, s6"); A("s_lshl_b32 s65, s65, 11"); A("s_mul_i32 s9, s11, 448"); A("s_add_u32 s65, s65, s9"); A(f"s_add_u32 s65, s65, {WS_Y}")
    A("s_mov_b32 s66, 0xffff0000"); A("s_mov_b32 s67, 0")
    srd(40, 34, 1792*2)
    def colreduce(r):
        A(f"v_permlane32_swap_b32 v{r}, v{r+1}"); A(f"v_permlane32_swap_b32 v{r+2}, v{r+3}")
        A(f"v_add_f32 v{r}, v{r}, v{r+1}"); A(f"v_add_f32 v{r+2}, v{r+2}, v{r+3}")
        A(f"v_permlane16_swap_b32 v{r}, v{r+2}"); A(f"v_add_f32 v{r}, v{r}, v{r+2}")
        A(f"v_add_f32_dpp v{r}, v{r}, v{r} row_ror:8 row_mask:0xf bank_mask:0xf")
        A(f"v_add_f32_dpp v{r}, v{r}, v{r} row_ror:4 row_mask:0xf bank_mask:0xf")
    def rnd(r): A(f"v_cvt_pk_bf16_f32 v{r}, v{r}, v{r}"); A(f"v_lshlrev_b32 v{r}, 16, v{r}")
    A(f"s_sub_u32 s68, s2, {RED0}"); A("s_cmp_ge_u32 s68, 28"); A("s_cbranch_scc1 L_nopre")
    A("s_mov_b32 s9, 0")
    A("L_ack1:")
    A("buffer_load_dword v9, off, s[52:55], 0 sc1"); A("s_waitcnt vmcnt(0)"); A("v_readfirstlane_b32 s8, v9")
    A("s_cmp_ge_u32 s8, 256"); A("s_cbranch_scc1 L_ack2"); A("s_sleep 8"); A("s_add_u32 s9, s9, 1"); A(f"s_cmp_lt_u32 s9, {TMO}"); A("s_cbranch_scc1 L_ack1")
    A("L_ack2:")
    A("s_or_b32 s8, s68, s11"); A("s_cmp_lg_u32 s8, 0"); A("s_cbranch_scc1 L_noE")
    A("s_mov_b64 exec, 1"); A(f"buffer_store_dwordx2 v[20:21], off, s[48:51], 0 offset:{WS_E} sc1"); A("s_mov_b64 exec, -1")
    A("L_noE:")
    A("s_mul_i32 s69, s68, 37"); A("s_lshr_b32 s69, s69, 8")
    A("s_mul_i32 s8, s69, 7"); A("s_sub_u32 s70, s68, s8"); A("s_lshl_b32 s70, s70, 6"); A("s_lshl_b32 s8, s11, 4"); A("s_add_u32 s70, s70, s8")
    A("v_lshrrev_b32 v9, 2, v1"); A("v_and_b32 v10, 3, v1")
    A("v_lshlrev_b32 v3, 13, v9"); A("v_lshl_add_u32 v3, v10, 4, v3")
    A("v_lshlrev_b32 v4, 11, v9"); A("v_lshl_add_u32 v4, v10, 4, v4")
    A("v_lshrrev_b32 v9, 5, v1"); A("v_lshl_add_u32 v10, v10, 2, v9"); A("v_bfe_u32 v9, v1, 4, 1"); A("v_lshl_add_u32 v10, v9, 1, v10")
    A("s_mul_i32 s8, s69, 448"); A("s_add_u32 s8, s8, s70"); A("v_add_u32 v10, s8, v10"); A("v_lshlrev_b32 v7, 1, v10")
    srd(44, 16, 1792*2)
    A("buffer_load_ushort v8, v7, s[44:47], 0 offen")
    A("s_lshl_b32 s12, s69, 11"); A("s_lshl_b32 s8, s70, 2"); A("s_add_u32 s12, s12, s8"); A(f"s_add_u32 s12, s12, {WS_YF}"); A(f"s_add_u32 s13, s12, {16*8192}")
    A("s_lshl_b32 s71, s69, 17"); A("s_add_u32 s71, s71, s8"); A(f"s_add_u32 s71, s71, {WS_Y}")
    for k in range(1, 4): A(f"s_add_u32 s{71+k}, s71, {k*16*2048}")
    for i in range(4): A(f"v_mov_b32 v{16+i}, 0")
    A("s_mov_b32 s9, 0")
    A("L_yf1:")
    A("buffer_load_dwordx4 v[12:15], v3, s[48:51], s12 offen sc1")
    A("s_mov_b32 exec_hi, 0xffff")
    A("buffer_load_dwordx4 v[16:19], v3, s[48:51], s13 offen sc1")
    A("s_mov_b32 exec_hi, -1")
    A("s_waitcnt vmcnt(0)")
    A("v_max3_u32 v9, v12, v13, v14"); A("v_max3_u32 v10, v15, v16, v17"); A("v_max3_u32 v9, v9, v18, v19"); A("v_max_u32 v9, v9, v10")
    A("v_cmp_eq_u32 vcc, -1, v9"); A("s_cbranch_vccz L_yf2")
    A("s_sleep 16"); A("s_add_u32 s9, s9, 1"); A(f"s_cmp_lt_u32 s9, {TMO}"); A("s_cbranch_scc1 L_yf1")
    A("L_yf2:")
    for i in range(4): A(f"v_add_f32 v{12+i}, v{12+i}, v{16+i}")
    colreduce(12); rnd(12)
    A("v_mov_b32 v22, v12"); A("v_lshlrev_b32 v8, 16, v8")
    A("L_nopre:")
    A("v_lshlrev_b32 v9, 4, v1")
    stamp(4)
    A("s_barrier")
    stamp(5)
    A(f"ds_read_b128 v[12:15], v9 offset:{L_O}")
    A("s_waitcnt lgkmcnt(0)")
    A("v_add_f32 v12, v12, v13"); A("v_add_f32 v14, v14, v15"); A("v_add_f32 v12, v12, v14")
    A("v_mov_b32_dpp v13, v12 quad_perm:[1,0,3,2] row_mask:0xf bank_mask:0xf")
    A("v_cvt_pk_bf16_f32 v12, v12, v13")
    for m in range(8): A(f"v_mov_b32_dpp v{AA+m}, v12 row_newbcast:{2*m} row_mask:0xf bank_mask:0xf")
    mfmas()
    for m in range(4): A(f"v_cndmask_b32 v{12+m}, v{DD+4*m}, v{DD+4*(m+4)}, s[66:67]")
    for m in range(4): A(f"v_min_u32 v{12+m}, -2, v{12+m}")
    A("s_mov_b32 exec_lo, 0x3fff3fff"); A("s_mov_b32 exec_hi, 0")
    A("buffer_store_dwordx4 v[12:15], v2, s[48:51], s65 offen sc1")
    A("s_mov_b64 exec, -1")
    stamp(6)
    A("s_cmp_ge_u32 s68, 28"); A("s_cbranch_scc1 L_hend")
    for k in range(4): A(f"s_mov_b64 s[{12+2*k if k < 2 else 72+2*k}:{13+2*k if k < 2 else 73+2*k}], -1")
    MS = ["s[12:13]", "s[14:15]", "s[76:77]", "s[78:79]"]
    A("s_mov_b32 s9, 0")
    A("L_y1:")
    for k in range(4):
        A(f"s_mov_b64 exec, {MS[k]}")
        A(f"buffer_load_dwordx4 v[{DD+4*k}:{DD+4*k+3}], v4, s[48:51], s{71+k} offen sc1")
    A("s_mov_b64 exec, -1")
    for k in range(4):
        A(f"s_waitcnt vmcnt({3-k})")
        A(f"v_max3_u32 v9, v{DD+4*k}, v{DD+4*k+1}, v{DD+4*k+2}"); A(f"v_max_u32 v9, v9, v{DD+4*k+3}")
        A(f"v_cmp_eq_u32 {MS[k]}, -1, v9")
    A("s_nop 1")
    A(f"s_or_b64 vcc, {MS[0]}, {MS[1]}"); A(f"s_or_b64 vcc, vcc, {MS[2]}"); A(f"s_or_b64 vcc, vcc, {MS[3]}"); A("s_cbranch_scc0 L_y2")
    A("s_add_u32 s9, s9, 1"); A(f"s_cmp_lt_u32 s9, {TMO}"); A("s_cbranch_scc1 L_y1")
    A("L_y2:")
    for i in range(4):
        A(f"v_add_f32 v{DD+i}, v{DD+i}, v{DD+4+i}"); A(f"v_add_f32 v{DD+8+i}, v{DD+8+i}, v{DD+12+i}")
    for i in range(4): A(f"v_add_f32 v{DD+i}, v{DD+i}, v{DD+8+i}")
    colreduce(DD); rnd(DD)
    A(f"v_add_f32 v{DD}, v8, v{DD}"); rnd(DD)
    A(f"v_add_f32 v{DD}, v{DD}, v22"); A(f"v_cvt_pk_bf16_f32 v{DD}, v{DD}, v{DD}")
    A("s_mov_b32 exec_lo, 0x000f000f"); A("s_mov_b32 exec_hi, 0x000f000f")
    A(f"buffer_store_short v{DD}, v7, s[40:43], 0 offen")
    A("L_hend:")
    stamp(7)
    stamp_out(8)
    A("L_end:")
    A("s_endpgm")

    body, nn = fix_hazards(L)
    out = []
    out.append(f"; @launch grid=(256,1,1) block=(512,1,1) lds={LDS_SZ}")
    out += ['.amdgcn_target "amdgcn-amd-amdhsa--gfx950"', ".text", f".globl {KN}_kernel", ".p2align 8", f".type {KN}_kernel,@function"]
    out += [(l if l.endswith(":") else "    " + l) for l in body]
    out += ['.section .rodata,"a"', ".p2align 6", f".amdhsa_kernel {KN}_kernel",
            "  .amdhsa_next_free_vgpr 256", "  .amdhsa_next_free_sgpr 102", "  .amdhsa_accum_offset 256",
            "  .amdhsa_group_segment_fixed_size 0", "  .amdhsa_kernarg_size 96", "  .amdhsa_user_sgpr_count 2",
            "  .amdhsa_user_sgpr_kernarg_segment_ptr 1", "  .amdhsa_system_sgpr_workgroup_id_x 1",
            "  .amdhsa_float_denorm_mode_32 3", ".end_amdhsa_kernel"]
    return "\n".join(out) + "\n"

if __name__ == "__main__":
    kw = eval("dict(%s)" % (sys.argv[2] if len(sys.argv) > 2 else ""))
    open(sys.argv[1], "w").write(gen(**kw))
```
